```python
import torch

def _softmax(x, axis=-1):
    return torch.softmax(x, dim=axis)
def _gelu(x):
    return torch.nn.functional.gelu(x, approximate="tanh")
def _silu(x):
    return torch.nn.functional.silu(x)
def _sigmoid(x):
    return torch.sigmoid(x)
def _layernorm(x, axis=-1, eps=1e-5):
    m = x.mean(dim=axis, keepdim=True)
    v = x.var(dim=axis, keepdim=True, unbiased=False)
    return (x - m) / torch.sqrt(v + eps)
def _scatter_add(tgt, idx, src, axis=0):
    return tgt.clone().index_add_(axis, idx, src)
def _segment_sum(src, seg, n):
    out = torch.zeros((n,) + src.shape[1:], dtype=src.dtype)
    return out.index_add_(0, seg, src)
def _pad(x, pw):
    flat = tuple(v for pair in reversed(pw) for v in pair)
    return torch.nn.functional.pad(x, flat)

kernel_name = 'recurrent_scan__sliding_local_dilated__swiglu_ffn__prompt'

def setup_inputs():

    _w = (lambda a: (lambda t: t.to(torch.bfloat16) if t.is_floating_point() else t)(torch.as_tensor(a)))
    def _A_setup():
        B, S, D = 1, 2048, 448
        return {
            "x": _w((lambda *s: torch.randn(*s, dtype=torch.bfloat16) * 0.05)(B, S, D)),
            "wqkv": _w((lambda *s: torch.randn(*s, dtype=torch.bfloat16) * 0.05)(D, 3 * D)),
            "wo": _w((lambda *s: torch.randn(*s, dtype=torch.bfloat16) * 0.05)(D, D)),
        }
    _A_in = _A_setup()

    def _B_setup():
        B, S, D, F = 1, 2048, 448, 1792
        return {
            "x": _w((lambda *s: torch.randn(*s, dtype=torch.bfloat16) * 0.05)(B, S, D)),
            "w_gate": _w((lambda *s: torch.randn(*s, dtype=torch.bfloat16) * 0.05)(D, F)),
            "w_up": _w((lambda *s: torch.randn(*s, dtype=torch.bfloat16) * 0.05)(D, F)),
            "w_down": _w((lambda *s: torch.randn(*s, dtype=torch.bfloat16) * 0.05)(F, D)),
        }
    _B_in = _B_setup()

    return {
        "A_x": _A_in["x"],
        "A_wqkv": _A_in["wqkv"],
        "A_wo": _A_in["wo"],
        "B_x": _B_in["x"],
        "B_w_gate": _B_in["w_gate"],
        "B_w_up": _B_in["w_up"],
        "B_w_down": _B_in["w_down"],
    }

def reference(A_x, A_wqkv, A_wo, B_x, B_w_gate, B_w_up, B_w_down):
    def _A_ref(x, wqkv, wo):
        B, S, D = x.shape
        H = 16; Dh = D // H
        W, dil = 8, 2
        qkv = (lambda x, *d: x.permute(*d))((x @ wqkv).reshape(B, S, 3, H, Dh), 2, 0, 3, 1, 4)
        q, k, v = qkv[0], qkv[1], qkv[2]
        scale = Dh ** -0.5
        pos = torch.arange(S)
        off = torch.arange(W) * dil
        idx = pos[:, None] - off[None, :]
        mask = idx >= 0
        idx_c = torch.where(mask, idx, 0).reshape(-1)
        kg = k[:, :, idx_c, :].reshape(B, H, S, W, Dh)
        vg = v[:, :, idx_c, :].reshape(B, H, S, W, Dh)
        logits = torch.einsum("bhsd,bhswd->bhsw", q, kg) * scale
        logits = torch.where(mask[None, None, :, :], logits, -1e9)
        attn = _softmax(logits, axis=-1)
        o = torch.einsum("bhsw,bhswd->bhsd", attn, vg)
        return (lambda x, *d: x.permute(*d))(o, 0, 2, 1, 3).reshape(B, S, D) @ wo

    def _B_ref(x, w_gate, w_up, w_down):
        g = _silu(x @ w_gate)
        u = x @ w_up
        return (g * u) @ w_down

    x = A_x
    xn = _layernorm(x, axis=-1)
    s = _A_ref(xn, A_wqkv, A_wo)
    g = _silu(_B_ref(xn, B_w_gate, B_w_up, B_w_down))
    return x + s * g
```

```python
import re


def vr(a, n=1):
    return f'v{a}' if n == 1 else f'v[{a}:{a + n - 1}]'


def sr(a, n=1):
    return f's{a}' if n == 1 else f's[{a}:{a + n - 1}]'


_REG = re.compile(r'\b([vs])(\d+)\b|\b([vs])\[(\d+):(\d+)\]|\b(vcc|exec|m0|scc)\b')


def regs_of(op):
    out = set()
    for m in _REG.finditer(op):
        if m.group(1):
            out.add(m.group(1) + m.group(2))
        elif m.group(3):
            for k in range(int(m.group(4)), int(m.group(5)) + 1):
                out.add(m.group(3) + str(k))
        else:
            out.add(m.group(6))
    return out


TRANS = ('v_exp_f32', 'v_log_f32', 'v_rcp_f32', 'v_rsq_f32', 'v_sqrt_f32', 'v_sin_f32', 'v_cos_f32')


class Ins:
    __slots__ = ('text', 'kind', 'rd', 'wr', 'passes', 'srcc', 'srcab', 'states', 'storedata', 'dpp', 'comment')

    def __init__(self, text, kind, rd=(), wr=(), passes=0, srcc=(), srcab=(), states=1, storedata=(), dpp=False):
        self.text = text
        self.kind = kind
        self.rd = set(rd)
        self.wr = set(wr)
        self.passes = passes
        self.srcc = set(srcc)
        self.srcab = set(srcab)
        self.states = states
        self.storedata = set(storedata)
        self.dpp = dpp


class Asm:
    def __init__(self):
        self.ins = []
        self.vm_issued = 0
        self.vm_done = 0
        self.ds_issued = 0
        self.ds_done = 0
        self.smem_pending = False
        self.cond_depth = 0
        self.nlabel = 0

    def raw(self, text, kind='other', **kw):
        self.ins.append(Ins(text, kind, **kw))

    def comment(self, text):
        self.ins.append(Ins('; ' + text, 'comment', states=0))

    def label(self, name):
        self.ins.append(Ins(name + ':', 'label', states=0))

    def newlabel(self, base='L'):
        self.nlabel += 1
        return f'{base}_{self.nlabel}'

    def v(self, op, dst, *srcs, mods='', extra_wr=(), extra_rd=()):
        ops = [dst] + [str(s) for s in srcs]
        text = f'{op} ' + ', '.join(ops) + (' ' + mods if mods else '')
        wr = regs_of(dst) | set(extra_wr)
        rd = set(extra_rd)
        for s in srcs:
            rd |= regs_of(str(s))
        base = op.replace('_e32', '').replace('_e64', '').replace('_dpp', '')
        kind = 'trans' if base in TRANS else 'valu'
        if base in ('v_fmac_f32', 'v_dot2c_f32_bf16'):
            rd |= regs_of(dst)
        if base.startswith('v_permlane'):
            kind = 'perm'
            rd |= regs_of(dst)
            wr |= regs_of(str(srcs[0]))
        if base in ('v_readfirstlane_b32', 'v_readlane_b32'):
            kind = 'readlane'
        dpp = ('row_' in mods) or ('quad_perm' in mods)
        self.ins.append(Ins(text, kind, rd=rd, wr=wr, dpp=dpp))

    def s(self, op, dst, *srcs):
        ops = [dst] + [str(x) for x in srcs]
        text = f'{op} ' + ', '.join(ops)
        if op.startswith('s_cmp') or op.startswith('s_bitcmp'):
            rd = regs_of(dst)
            for x in srcs:
                rd |= regs_of(str(x))
            self.ins.append(Ins(text, 'salu', rd=rd, wr={'scc'}))
            return
        rd = set()
        for x in srcs:
            rd |= regs_of(str(x))
        self.ins.append(Ins(text, 'salu', rd=rd, wr=regs_of(dst)))

    def mfma(self, shape, d, a, b, c):
        if shape == '32':
            nd, passes, op = 16, 8, 'v_mfma_f32_32x32x16_bf16'
        else:
            nd, passes, op = 4, 4, 'v_mfma_f32_16x16x32_bf16'
        cs = '0' if c is None else vr(c, nd)
        text = f'{op} {vr(d, nd)}, {vr(a, 4)}, {vr(b, 4)}, {cs}'
        srcc = set() if c is None else regs_of(cs)
        srcab = regs_of(vr(a, 4)) | regs_of(vr(b, 4))
        self.ins.append(Ins(text, 'mfma', rd=srcc | srcab, wr=regs_of(vr(d, nd)), passes=passes, srcc=srcc, srcab=srcab))

    def _vm(self):
        if self.cond_depth:
            return None
        self.vm_issued += 1
        return self.vm_issued - 1

    def bload(self, n, dst, voff, srd, soff, offset=0, mods=''):
        op = {1: 'buffer_load_dword', 2: 'buffer_load_dwordx2', 4: 'buffer_load_dwordx4'}[n]
        o = f' offset:{offset}' if offset else ''
        text = f'{op} {vr(dst, n)}, {vr(voff)}, {sr(srd, 4)}, {soff} offen{o}' + (' ' + mods if mods else '')
        rd = {f'v{voff}'} | regs_of(sr(srd, 4)) | regs_of(str(soff))
        self.ins.append(Ins(text, 'vmem', rd=rd, wr=regs_of(vr(dst, n))))
        return self._vm()

    def bload_lds(self, voff, srd, soff, offset=0, mods=''):
        o = f' offset:{offset}' if offset else ''
        text = f'buffer_load_dwordx4 {vr(voff)}, {sr(srd, 4)}, {soff} offen{o}' + (' ' + mods if mods else '') + ' lds'
        rd = {f'v{voff}', 'm0'} | regs_of(sr(srd, 4)) | regs_of(str(soff))
        self.ins.append(Ins(text, 'vmemlds', rd=rd))
        return self._vm()

    def bstore(self, n, src, voff, srd, soff, offset=0, mods=''):
        op = {1: 'buffer_store_dword', 2: 'buffer_store_dwordx2', 4: 'buffer_store_dwordx4'}[n]
        o = f' offset:{offset}' if offset else ''
        text = f'{op} {vr(src, n)}, {vr(voff)}, {sr(srd, 4)}, {soff} offen{o}' + (' ' + mods if mods else '')
        data = regs_of(vr(src, n))
        rd = {f'v{voff}'} | regs_of(sr(srd, 4)) | regs_of(str(soff)) | data
        self.ins.append(Ins(text, 'vmem', rd=rd, storedata=data if n >= 3 else ()))
        return self._vm()

    def _ds(self):
        if self.cond_depth:
            return None
        self.ds_issued += 1
        return self.ds_issued - 1

    def dsread(self, op, dst, n, addr, offset=0):
        assert 0 <= offset < 65536, offset
        o = f' offset:{offset}' if offset else ''
        text = f'{op} {vr(dst, n)}, {vr(addr)}{o}'
        self.ins.append(Ins(text, 'ds', rd={f'v{addr}'}, wr=regs_of(vr(dst, n))))
        return self._ds()

    def dswrite(self, op, addr, src, n, offset=0):
        assert 0 <= offset < 65536, offset
        o = f' offset:{offset}' if offset else ''
        text = f'{op} {vr(addr)}, {vr(src, n)}{o}'
        self.ins.append(Ins(text, 'ds', rd={f'v{addr}'} | regs_of(vr(src, n))))
        return self._ds()

    def sload(self, n, dst, base, off):
        op = {1: 's_load_dword', 2: 's_load_dwordx2', 4: 's_load_dwordx4', 8: 's_load_dwordx8', 16: 's_load_dwordx16'}[n]
        text = f'{op} {sr(dst, n)}, {sr(base, 2)}, {off}'
        self.ins.append(Ins(text, 'smem', rd=regs_of(sr(base, 2)) | regs_of(str(off)), wr=regs_of(sr(dst, n))))
        self.smem_pending = True

    def wait(self, vm=None, ds=None):
        parts = []
        if isinstance(vm, (list, tuple)):
            vm = max([t for t in vm if t is not None], default=None)
        if isinstance(ds, (list, tuple)):
            ds = max([t for t in ds if t is not None], default=None)
        if vm is not None and vm >= self.vm_done:
            n = min(self.vm_issued - vm - 1, 63)
            parts.append(f'vmcnt({n})')
            if not self.cond_depth:
                self.vm_done = max(self.vm_done, self.vm_issued - n)
        if ds is not None and ds >= self.ds_done:
            n = min(self.ds_issued - ds - 1, 15)
            if self.smem_pending:
                n = 0
                if not self.cond_depth:
                    self.smem_pending = False
            parts.append(f'lgkmcnt({n})')
            if not self.cond_depth:
                self.ds_done = max(self.ds_done, self.ds_issued - n)
        if parts:
            self.raw('s_waitcnt ' + ' '.join(parts), 'wait')

    def wait_all(self, vm=True, lgkm=True):
        parts = []
        if vm:
            parts.append('vmcnt(0)')
            if not self.cond_depth:
                self.vm_done = self.vm_issued
        if lgkm:
            parts.append('lgkmcnt(0)')
            if not self.cond_depth:
                self.ds_done = self.ds_issued
                self.smem_pending = False
        self.raw('s_waitcnt ' + ' '.join(parts), 'wait')

    def barrier(self):
        self.raw('s_barrier', 'barrier')

    def branch(self, op, label):
        self.raw(f'{op} {label}', 'branch', rd={'scc'} if 'scc' in op else set())

    def nop(self, n):
        while n > 0:
            k = min(n, 16)
            self.raw(f's_nop {k - 1}', 'nop', states=k)
            n -= k

    @staticmethod
    def _need(p, c):
        need = 0
        pv = p.kind in ('valu', 'trans', 'perm', 'readlane')
        cv = c.kind in ('valu', 'trans', 'perm', 'readlane')
        pwv = {r for r in p.wr if r[0] == 'v' and r != 'vcc'}
        pws = {r for r in p.wr if r[0] == 's' and r != 'scc'} | ({'vcc'} if 'vcc' in p.wr else set())
        if pv:
            if c.kind == 'mfma' and (pwv & c.rd):
                need = max(need, 2)
            if c.kind in ('vmem', 'vmemlds') and (pws & c.rd):
                need = max(need, 5)
            if cv and (pws & c.rd):
                need = max(need, 4 if c.kind == 'readlane' else 2)
            if c.kind == 'readlane' and (pwv & c.rd):
                need = max(need, 1)
            if c.kind == 'perm' and (pwv & c.rd):
                need = max(need, 2)
            if cv and c.dpp and (pwv & c.rd):
                need = max(need, 2)
            if p.kind == 'trans' and cv and c.kind != 'trans' and (pwv & (c.rd | c.wr)):
                need = max(need, 1)
            if p.kind == 'trans' and c.kind in ('vmem', 'ds', 'mfma', 'trans') and (pwv & c.rd):
                need = max(need, 2 if c.kind == 'mfma' else 1)
            if 'exec' in p.wr and (cv or c.kind == 'mfma'):
                need = max(need, 5)
            if c.kind == 'salu' and (pws & c.rd):
                need = max(need, 1)
            if c.kind == 'branch' and 'vcc' in p.wr:
                need = max(need, 5)
        if p.kind == 'mfma':
            big = {8: 12, 4: 8}[p.passes]
            ovl = {8: 10, 4: 6}[p.passes]
            war = {8: 7, 4: 3}[p.passes]
            if c.kind == 'mfma':
                if p.wr & c.srcab:
                    need = max(need, big)
                if p.wr & c.srcc:
                    if not (p.wr == c.srcc and p.passes == c.passes):
                        need = max(need, ovl)
                elif p.wr & c.wr:
                    need = max(need, big)
            elif c.kind in ('valu', 'trans', 'perm', 'readlane', 'vmem', 'vmemlds', 'ds'):
                if p.wr & (c.rd | c.wr):
                    need = max(need, big)
                if cv and (p.srcc & c.wr):
                    need = max(need, war)
        if p.kind == 'salu' and 'm0' in p.wr and c.kind == 'vmemlds':
            need = max(need, 1)
        if p.storedata and (p.storedata & c.wr):
            need = max(need, 2)
        return need

    def finalize(self):
        out = []
        windows = [[]]
        saved = {}
        seen_labels = set()

        def need_for(ins, win):
            extra = 0
            dist = 0
            for p in reversed(win):
                req = self._need(p, ins)
                if req > dist:
                    extra = max(extra, req - dist)
                dist += p.states
                if dist > 20:
                    break
            return extra

        def push(ins):
            for w in windows:
                w.append(ins)
                if len(w) > 48:
                    del w[:-32]

        for ins in self.ins:
            if ins.kind == 'comment':
                out.append(ins)
                continue
            if ins.kind == 'label':
                name = ins.text[:-1]
                seen_labels.add(name)
                for w in saved.pop(name, []):
                    windows.append(w)
                out.append(ins)
                continue
            extra = max(need_for(ins, w) for w in windows)
            while extra > 0:
                k = min(extra, 16)
                n = Ins(f's_nop {k - 1}', 'nop', states=k)
                out.append(n)
                push(n)
                extra -= k
            out.append(ins)
            push(ins)
            if ins.kind == 'branch':
                tgt = ins.text.split()[-1]
                if tgt not in seen_labels:
                    saved.setdefault(tgt, []).extend([list(w) for w in windows])
                if ins.text.startswith('s_branch'):
                    windows = [[]]
            if len(windows) > 1:
                base = windows[0][-22:]
                windows = [windows[0]] + [w for w in windows[1:] if not (len(w) >= 22 and len(base) == 22 and all(a is b for a, b in zip(w[-22:], base)))]
        self.final = out
        return '\n'.join(('    ' + i.text) if i.kind not in ('label',) else i.text for i in out)
```

```python
import sys, math, struct
from emit import Asm, vr, sr

NAME = 'recurrent_scan__sliding_local_dilated__swiglu_ffn__prompt'

WS_FI = 0
WS_FJ = 2048
WS_STATS = 4096
WS_CSUM = 32768
WS_QKV = 0x80000
WS_H = WS_QKV + 64 * 84 * 1024
WS_O = WS_H + 64 * 112 * 1024
WS_END = WS_O + 64 * 28 * 1024
OOB = 0x40000000

LDS_TOTAL = 163840
LDS_CS = LDS_TOTAL - 2048
RING = LDS_CS

LOG2E = 1.4426950408889634


def f2u(x):
    return struct.unpack('<I', struct.pack('<f', x))[0]


def fhex(x):
    return hex(f2u(x))


P_X, P_WQKV, P_WO, P_BX, P_WG, P_WU, P_WD, P_OUT, P_DBG, P_WS = 4, 6, 8, 10, 12, 14, 16, 18, 20, 22
SX, SS0, SS1, SS2, SWD, SWO, SOUT, SWS, SDBG, STMP = 24, 28, 32, 36, 40, 44, 48, 52, 56, 60
_s = 64
def _sa():
    global _s
    _s += 1
    return _s - 1
sWAVE, sI, sJ, sW1024, sW2048, sXO, sO0, sO1, sO2, sST, sST64, sC3, sC4, sGEN8, sMT, sNT, sCNT = [_sa() for _ in range(17)]
sT0, sT1, sT2, sT3, sLIGHT, sP2, sFH, sTG, sHA, sQ0, sQ1, sQ2, sW2O, sAO, sG = [_sa() for _ in range(15)]
sM0, sM1 = 96, 97
sX0 = 98
assert _s <= 96

vLANE = 1
vXD0, vXD1, vWD0, vWD1, vWD2, vW2D = 2, 3, 4, 5, 6, 7
vXR = [8, 9, 10, 11]
vWR = [12, 13, 14]
vL16 = 15
vCS = 16
vNEGM, vR, vNRL, vVV = 18, 19, 20, 21
vPOLL, vPOFF = 22, 23
WF = 24
ACC1 = 48
ACC2 = 96
XF = 128
TMP = 240


class Lds:
    def __init__(self, size):
        self.free = [(0, size)]

    def alloc(self, size):
        for k, (a, n) in enumerate(self.free):
            if n >= size:
                if n == size:
                    self.free.pop(k)
                else:
                    self.free[k] = (a + size, n - size)
                return a
        return None

    def release(self, a, size):
        self.free.append((a, size))
        self.free.sort()
        m = []
        for a, n in self.free:
            if m and m[-1][0] + m[-1][1] == a:
                m[-1] = (m[-1][0], m[-1][1] + n)
            else:
                m.append((a, n))
        self.free = m


class AddrGroup:
    def __init__(self, A, regs, base=0):
        self.A, self.regs, self.base = A, list(regs), base

    def off(self, absaddr, span=0):
        if not (self.base <= absaddr and absaddr + span - self.base < 65536):
            nb = absaddr & ~1023
            d = nb - self.base
            for r in self.regs:
                if d >= 0:
                    self.A.v('v_add_u32', vr(r), hex(d), vr(r))
                else:
                    self.A.v('v_subrev_u32', vr(r), hex(-d), vr(r))
            self.base = nb
        return absaddr - self.base


class Item:
    def __init__(self, kind, idx, size):
        self.kind, self.idx, self.size = kind, idx, size
        self.addr = None
        self.tok = None


class Gen:
    def __init__(self, stop=None, opts=None):
        self.A = Asm()
        self.stop = stop
        self.o = dict(fill_per_mfma=6, max_dma_step=6, p2_round=5, prefetch=True)
        if opts:
            self.o.update(opts)
        self.lds = Lds(RING)
        self.items = {}
        q = []
        for n in range(7):
            q += [Item('x', n, 16384), Item('gu', n, 16384), Item('q', n, 8192)]
        for n in range(7, 14):
            q.append(Item('gu', n, 16384))
        q.append(Item('att', 0, 29696))
        for s in range(35):
            q.append(Item('w2', s, 8192))
        self.queue = q
        for it in q:
            self.items[(it.kind, it.idx)] = it
        self.dmaq = []

    def srd(self, dst, ptr, size):
        A = self.A
        A.s('s_mov_b32', sr(dst), sr(ptr))
        A.s('s_mov_b32', sr(dst + 1), sr(ptr + 1))
        A.s('s_mov_b32', sr(dst + 2), hex(size) if isinstance(size, int) else size)
        A.s('s_mov_b32', sr(dst + 3), '0x20000')

    def sel(self, dst, a, b):
        A = self.A
        A.s('s_mov_b32', sr(dst), b)
        A.s('s_cselect_b32', sr(dst), a, sr(dst))

    def alloc_items(self, limit=None):
        n = 0
        while self.queue:
            it = self.queue[0]
            if limit is not None and len(self.dmaq) >= limit:
                break
            a = self.lds.alloc(it.size)
            if a is None:
                break
            it.addr = a
            self.queue.pop(0)
            self.dmaq += self.dma_ops(it)
            n += 1
        return n

    def dma_ops(self, it):
        A = self.A
        ops = []
        if it.kind == 'x':
            def f(it=it):
                A.s('s_add_u32', 'm0', sr(sW2048), hex(it.addr))
                A.bload_lds(vXD0, SX, sr(sXO))
                it.tok = A.bload_lds(vXD1, SX, sr(sXO), offset=1024)
                A.s('s_add_u32', sr(sXO), sr(sXO), 128)
            ops.append(f)
        elif it.kind == 'gu':
            def f0(it=it):
                if it.idx == 7:
                    A.s('s_mov_b32', sr(sO0), sr(sC3))
                    A.s('s_mov_b32', sr(sO1), sr(sC4))
                A.s('s_add_u32', 'm0', sr(sW1024), hex(it.addr))
                A.bload_lds(vWD0, SS0, sr(sO0))
                A.s('s_add_u32', sr(sO0), sr(sO0), sr(sST64))
            def f1(it=it):
                A.s('s_add_u32', 'm0', sr(sW1024), hex(it.addr + 8192))
                it.tok = A.bload_lds(vWD1, SS1, sr(sO1))
                A.s('s_add_u32', sr(sO1), sr(sO1), sr(sST64))
            ops += [f0, f1]
        elif it.kind == 'q':
            def f(it=it):
                A.s('s_add_u32', 'm0', sr(sW1024), hex(it.addr))
                it.tok = A.bload_lds(vWD2, SS2, sr(sO2))
                A.s('s_add_u32', sr(sO2), sr(sO2), hex(64 * 2688))
            ops.append(f)
        elif it.kind == 'w2':
            def f(it=it):
                s = it.idx
                if s == 14:
                    A.s('s_add_u32', sr(sW2O), sr(sW2O), hex(14 * 32 * 896))
                if s == 28:
                    A.s('s_mov_b32', sr(sW2O), sr(sC3))
                A.s('s_add_u32', 'm0', sr(sW1024), hex(it.addr))
                it.tok = A.bload_lds(vW2D, SWD if s < 28 else SWO, sr(sW2O))
                A.s('s_add_u32', sr(sW2O), sr(sW2O), hex(32 * 896))
            ops.append(f)
        return ops

    def free_item(self, kind, idx):
        it = self.items[(kind, idx)]
        self.lds.release(it.addr, it.size)

    def flush_dma(self, n=None):
        k = 0
        while self.dmaq and (n is None or k < n):
            self.dmaq.pop(0)()
            k += 1

    def reduce64(self, v, t, op='v_add_f32'):
        A = self.A
        for k in (8, 4, 2, 1):
            A.v(op, vr(v), vr(v), vr(v), mods=f'row_ror:{k}')
        self.reduce_rows(v, t, op)

    def reduce_rows(self, v, t, op):
        A = self.A
        A.v('v_mov_b32', vr(t), vr(v))
        A.v('v_permlane16_swap_b32', vr(v), vr(t))
        A.v(op, vr(v), vr(v), vr(t))
        A.v('v_mov_b32', vr(t), vr(v))
        A.v('v_permlane32_swap_b32', vr(v), vr(t))
        A.v(op, vr(v), vr(v), vr(t))

    def poll_issue(self):
        return self.A.bload(1, vPOLL, vPOFF, SWS, 0, mods='sc1')

    def poll_check(self, tok, need):
        A = self.A
        A.wait(vm=tok)
        Lok, Lspin = A.newlabel('L_pok'), A.newlabel('L_pspin')
        A.s('s_add_u32', sr(sT0), sr(sGEN8), need)
        A.s('s_mov_b32', sr(sCNT), 200000)
        A.label(Lspin)
        A.v('v_subrev_u32', vr(vPOLL), sr(sT0), vr(vPOLL))
        A.v('v_cmp_gt_u32', 'vcc', 8 - need, vr(vPOLL))
        A.s('s_cmp_eq_u64', 'vcc', -1)
        A.branch('s_cbranch_scc1', Lok)
        A.cond_depth += 1
        A.bload(1, vPOLL, vPOFF, SWS, 0, mods='sc1')
        A.s('s_sub_u32', sr(sCNT), sr(sCNT), 1)
        A.wait_all(lgkm=False)
        A.s('s_cmp_lg_u32', sr(sCNT), 0)
        A.branch('s_cbranch_scc1', Lspin)
        A.cond_depth -= 1
        A.label(Lok)

    def publish(self, stage):
        A = self.A
        L = A.newlabel('L_pub')
        A.s('s_cmp_lg_u32', sr(sWAVE), 0)
        A.branch('s_cbranch_scc1', L)
        A.cond_depth += 1
        A.s('s_lshl_b32', sr(sT0), sr(sI), 7)
        A.s('s_lshl2_add_u32', sr(sT0), sr(sJ), sr(sT0))
        A.s('s_lshl_b32', sr(sT1), sr(sJ), 7)
        A.s('s_lshl2_add_u32', sr(sT1), sr(sI), sr(sT1))
        A.s('s_add_u32', sr(sT1), sr(sT1), WS_FJ)
        A.v('v_mov_b32', vr(self.ptmp), hex(OOB))
        A.v('v_writelane_b32', vr(self.ptmp), sr(sT0), 0, extra_rd={f'v{self.ptmp}'})
        A.v('v_writelane_b32', vr(self.ptmp), sr(sT1), 1, extra_rd={f'v{self.ptmp}'})
        A.s('s_add_u32', sr(sT0), sr(sGEN8), stage)
        A.v('v_mov_b32', vr(self.ptmp + 1), sr(sT0))
        A.bstore(1, self.ptmp + 1, self.ptmp, SWS, 0, mods='sc1')
        A.cond_depth -= 1
        A.label(L)

    def prologue(self):
        A = self.A
        A.s('s_cmp_ge_u32', 's2', 256)
        A.branch('s_cbranch_scc1', 'L_end')
        A.sload(16, 4, 0, 0)
        A.sload(4, 20, 0, 64)
        A.v('v_and_b32', vr(vLANE), 63, 'v0')
        A.v('v_lshrrev_b32', 'v0', 6, 'v0')
        A.s('s_and_b32', sr(sT0), 's2', 7)
        A.s('s_lshr_b32', sr(sT1), 's2', 3)
        A.v('v_readfirstlane_b32', sr(sWAVE), 'v0')
        A.s('s_and_b32', sr(sT2), sr(sT0), 1)
        A.s('s_lshl_b32', sr(sT2), sr(sT2), 3)
        A.s('s_and_b32', sr(sI), sr(sT1), 7)
        A.s('s_add_u32', sr(sI), sr(sI), sr(sT2))
        A.s('s_lshr_b32', sr(sT2), sr(sT0), 1)
        A.s('s_lshl_b32', sr(sT2), sr(sT2), 2)
        A.s('s_lshr_b32', sr(sJ), sr(sT1), 3)
        A.s('s_add_u32', sr(sJ), sr(sJ), sr(sT2))
        A.s('s_and_b32', sr(sMT), sr(sT1), 3)
        A.s('s_lshl2_add_u32', sr(sMT), sr(sT0), sr(sMT))
        A.s('s_lshr_b32', sr(sNT), sr(sT1), 2)
        A.s('s_cmp_lt_u32', sr(sNT), 7)
        A.s('s_cselect_b32', sr(sP2), 1, 0)
        A.s('s_cmp_ge_u32', sr(sJ), 14)
        A.s('s_cselect_b32', sr(sLIGHT), 1, 0)
        self.sel(sST, 2688, 3584)
        A.s('s_lshl_b32', sr(sST64), sr(sST), 6)
        A.s('s_lshl_b32', sr(sW1024), sr(sWAVE), 10)
        A.s('s_lshl_b32', sr(sW2048), sr(sWAVE), 11)
        A.s('s_lshr_b32', sr(sFH), sr(sWAVE), 2)
        A.s('s_and_b32', sr(sTG), sr(sWAVE), 3)
        A.s('s_lshl2_add_u32', sr(sG), sr(sI), sr(sTG))
        A.s('s_lshl_b32', sr(sO0), sr(sJ), 7)
        A.s('s_add_u32', sr(sC3), sr(sO0), 14 * 128)
        A.s('s_mov_b32', sr(sC4), sr(sC3))
        A.s('s_mov_b32', sr(sO1), sr(sO0))
        A.s('s_mov_b32', sr(sO2), sr(sO0))
        Ln = A.newlabel('L_norm')
        A.s('s_cmp_eq_u32', sr(sLIGHT), 0)
        A.branch('s_cbranch_scc1', Ln)
        A.s('s_cmp_eq_u32', sr(sJ), 14)
        self.sel(sO0, 14 * 128, 18 * 128)
        self.sel(sC3, 17 * 128, hex(OOB))
        A.s('s_add_u32', sr(sO1), sr(sO0), 128)
        A.s('s_add_u32', sr(sO2), sr(sO0), 256)
        A.s('s_mov_b32', sr(sC4), hex(OOB))
        A.label(Ln)
        t0, t1, t2, t3 = TMP, TMP + 1, TMP + 2, TMP + 3
        A.v('v_lshrrev_b32', vr(t0), 3, vr(vLANE))
        A.v('v_and_b32', vr(t1), 7, vr(vLANE))
        A.v('v_lshrrev_b32', vr(t2), 4, vr(vLANE))
        A.v('v_xor_b32', vr(t3), vr(t1), vr(t2))
        A.v('v_lshlrev_b32', vr(t3), 4, vr(t3))
        A.v('v_mul_u32_u24', vr(vXD0), 896, vr(t0))
        A.v('v_add_u32', vr(vXD0), vr(vXD0), vr(t3))
        A.v('v_xor_b32', vr(vXD1), 64, vr(vXD0))
        A.v('v_add_u32', vr(vXD1), 8 * 896 - 1024, vr(vXD1))
        A.v('v_and_b32', vr(t3), 1, vr(t2))
        A.v('v_lshlrev_b32', vr(t3), 2, vr(t3))
        A.v('v_xor_b32', vr(t3), vr(t1), vr(t3))
        A.v('v_lshlrev_b32', vr(t3), 4, vr(t3))
        A.v('v_mad_u32_u24', vr(vWD0), vr(t0), sr(sST), vr(t3))
        A.v('v_xor_b32', vr(vWD1), 32, vr(vWD0))
        A.v('v_mul_u32_u24', vr(vWD2), 2688, vr(t0))
        A.v('v_add_u32', vr(vWD2), vr(vWD2), vr(t3))
        A.v('v_lshlrev_b32', vr(t3), 1, vr(t2))
        A.v('v_xor_b32', vr(t3), vr(t1), vr(t3))
        A.v('v_lshlrev_b32', vr(t3), 4, vr(t3))
        A.v('v_mul_u32_u24', vr(vW2D), 896, vr(t0))
        A.v('v_add_u32', vr(vW2D), vr(vW2D), vr(t3))
        A.v('v_lshlrev_b32', vr(vL16), 4, vr(vLANE))
        vSO, vCO = TMP + 4, TMP + 5
        A.v('v_cmp_gt_u32', 'vcc', 56, vr(vLANE))
        A.v('v_mov_b32', vr(t3), hex(OOB))
        A.v('v_cndmask_b32', vr(vSO), vr(t3), vr(vL16), 'vcc')
        A.s('s_cmp_eq_u32', sr(sWAVE), 2)
        A.s('s_cselect_b32', sr(sT2), 2688, sr(sST))
        A.v('v_lshlrev_b32', vr(t1), 4, vr(t1))
        A.v('v_mad_u32_u24', vr(vCO), vr(t0), sr(sT2), vr(t1))
        A.v('v_cndmask_b32', vr(vCO), vr(t3), vr(vCO), 'vcc')
        A.s('s_mov_b32', sr(sT3), hex(OOB))
        for w, c in ((0, sO0), (1, sO1), (2, sO2), (3, sC3), (4, sC4)):
            A.s('s_cmp_eq_u32', sr(sWAVE), w)
            A.s('s_cselect_b32', sr(sT3), sr(c), sr(sT3))
        A.s('s_mul_i32', sr(sT0), sr(sI), 28)
        A.s('s_mul_i32', sr(sT0), sr(sT0), sr(sT2))
        A.s('s_add_u32', sr(sT3), sr(sT3), sr(sT0))
        A.s('s_mul_i32', sr(sT2), sr(sT2), 7)
        A.s('s_lshl_b32', sr(sT0), sr(sWAVE), 3)
        A.s('s_mul_i32', sr(sT1), sr(sT0), sr(sST))
        A.s('s_add_u32', sr(sO0), sr(sO0), sr(sT1))
        A.s('s_add_u32', sr(sO1), sr(sO1), sr(sT1))
        A.s('s_add_u32', sr(sC3), sr(sC3), sr(sT1))
        A.s('s_add_u32', sr(sC4), sr(sC4), sr(sT1))
        A.s('s_mul_i32', sr(sT1), sr(sT0), 2688)
        A.s('s_add_u32', sr(sO2), sr(sO2), sr(sT1))
        A.s('s_lshl_b32', sr(sT0), sr(sI), 7)
        A.s('s_lshl_b32', sr(sT1), sr(sWAVE), 4)
        A.s('s_add_u32', sr(sT1), sr(sT1), sr(sT0))
        A.s('s_mul_i32', sr(sXO), sr(sT1), 896)
        A.s('s_lshl_b32', sr(sT1), sr(sJ), 3)
        A.s('s_add_u32', sr(sT0), sr(sT0), sr(sT1))
        A.s('s_add_u32', sr(sCNT), sr(sT0), sr(sWAVE))
        A.s('s_mul_i32', sr(sT1), sr(sCNT), 896)
        A.wait_all(vm=False)
        self.srd(SX, P_X, 2048 * 896)
        self.srd(SS2, P_WQKV, 448 * 2688)
        A.s('s_cmp_eq_u32', sr(sLIGHT), 1)
        for dst, p in ((SS0, P_WG), (SS1, P_WU)):
            A.s('s_cselect_b32', sr(dst), sr(P_WQKV), sr(p))
            A.s('s_cselect_b32', sr(dst + 1), sr(P_WQKV + 1), sr(p + 1))
            self.sel(dst + 2, hex(448 * 2688), hex(448 * 3584))
            A.s('s_mov_b32', sr(dst + 3), '0x20000')
        self.srd(SWS, P_WS, WS_END)
        R0 = ACC1
        tok_stats = A.bload(4, R0, vSO, SX, sr(sT1))
        A.s('s_cmp_eq_u32', sr(sWAVE), 2)
        for k in range(3):
            A.s('s_cselect_b32', sr(STMP + k), sr(SS2 + k), sr(SS0 + k))
        A.s('s_cmp_eq_u32', sr(sWAVE), 1)
        for k in range(3):
            A.s('s_cselect_b32', sr(STMP + k), sr(SS1 + k), sr(STMP + k))
        A.s('s_cmp_eq_u32', sr(sWAVE), 4)
        for k in range(3):
            A.s('s_cselect_b32', sr(STMP + k), sr(SS1 + k), sr(STMP + k))
        A.s('s_mov_b32', sr(STMP + 3), '0x20000')
        C0 = ACC1 + 4
        for q in range(4):
            tok_cs = A.bload(4, C0 + 4 * q, vCO, STMP, sr(sT3))
            if q < 3:
                A.s('s_add_u32', sr(sT3), sr(sT3), sr(sT2))
        FL = ACC2
        Lnl = A.newlabel('L_nolead')
        A.s('s_lshl_b32', sr(sT0), 's2', 3)
        A.s('s_add_u32', sr(sT0), sr(sT0), sr(sWAVE))
        A.s('s_cmp_lg_u32', sr(sT0), 7)
        A.branch('s_cbranch_scc1', Lnl)
        A.cond_depth += 1
        A.v('v_lshrrev_b32', vr(t0), 2, vr(vLANE))
        A.v('v_and_b32', vr(t1), 3, vr(vLANE))
        A.v('v_lshlrev_b32', vr(t1), 4, vr(t1))
        A.v('v_lshl_or_b32', vr(t0), vr(t0), 7, vr(t1))
        A.bload(4, FL, t0, SWS, 0, mods='sc1')
        A.bload(4, FL + 4, t0, SWS, 0, offset=2048, mods='sc1')
        A.cond_depth -= 1
        A.label(Lnl)
        self.alloc_items()
        self.flush_dma()
        A.s('s_cmp_eq_u32', sr(sP2), 1)
        A.s('s_cselect_b32', sr(sT0), hex(1792 * 896), 0)
        A.s('s_cselect_b32', sr(sT1), hex(448 * 896), 0)
        self.srd(SWD, P_WD, sr(sT0))
        self.srd(SWO, P_WO, sr(sT1))
        self.srd(SOUT, P_OUT, 2048 * 896)
        self.srd(SDBG, P_DBG, 256)
        A.s('s_mul_i32', sr(sW2O), sr(sFH), 14 * 32 * 896)
        A.s('s_mul_i32', sr(sT0), sr(sTG), 8 * 896)
        A.s('s_add_u32', sr(sW2O), sr(sW2O), sr(sT0))
        A.s('s_lshl_b32', sr(sT0), sr(sNT), 7)
        A.s('s_add_u32', sr(sW2O), sr(sW2O), sr(sT0))
        A.s('s_mul_i32', sr(sHA), sr(sG), 112)
        A.s('s_lshl2_add_u32', sr(sHA), sr(sJ), sr(sHA))
        A.s('s_lshl1_add_u32', sr(sHA), sr(sFH), sr(sHA))
        A.s('s_lshl_b32', sr(sHA), sr(sHA), 10)
        A.s('s_add_u32', sr(sHA), sr(sHA), hex(WS_H))
        A.s('s_mul_i32', sr(sT0), sr(sG), 84)
        A.s('s_lshl1_add_u32', sr(sT0), sr(sFH), sr(sT0))
        A.s('s_cmp_eq_u32', sr(sJ), 14)
        A.s('s_cselect_b32', sr(sT1), 14, 18)
        A.s('s_lshl2_add_u32', sr(sQ0), sr(sT1), sr(sT0))
        A.s('s_lshl_b32', sr(sQ0), sr(sQ0), 10)
        A.s('s_add_u32', sr(sQ0), sr(sQ0), hex(WS_QKV))
        A.s('s_add_u32', sr(sQ1), sr(sQ0), 4096)
        A.s('s_add_u32', sr(sQ2), sr(sQ0), 8192)
        A.s('s_lshl2_add_u32', sr(sT1), sr(sJ), sr(sT0))
        A.s('s_lshl_b32', sr(sT1), sr(sT1), 10)
        A.s('s_add_u32', sr(sT1), sr(sT1), hex(WS_QKV))
        A.s('s_cmp_eq_u32', sr(sLIGHT), 1)
        A.s('s_cselect_b32', sr(sQ2), sr(sQ2), sr(sT1))
        tt, hh, g = TMP, TMP + 1, TMP + 2
        A.v('v_and_b32', vr(tt), 31, vr(vLANE))
        A.v('v_lshrrev_b32', vr(hh), 5, vr(vLANE))
        A.v('v_bfe_u32', vr(g), vr(vLANE), 1, 3)
        A.v('v_xor_b32', vr(g), vr(g), vr(hh))
        A.v('v_lshlrev_b32', vr(g), 4, vr(g))
        A.v('v_lshl_or_b32', vr(vXR[0]), vr(tt), 7, vr(g))
        A.s('s_lshl_b32', sr(sT0), sr(sTG), 12)
        A.v('v_add_u32', vr(vXR[0]), sr(sT0), vr(vXR[0]))
        for k in range(1, 4):
            A.v('v_xor_b32', vr(vXR[k]), 32 * k, vr(vXR[0]))
        fb, rr, cc, rb = TMP, TMP + 2, TMP + 3, TMP + 6
        A.v('v_bfe_u32', vr(fb), vr(vLANE), 4, 1)
        A.v('v_bfe_u32', vr(rr), vr(vLANE), 2, 2)
        A.v('v_lshl_add_u32', vr(rr), vr(hh), 3, vr(rr))
        A.v('v_lshlrev_b32', vr(rr), 7, vr(rr))
        A.v('v_and_b32', vr(cc), 3, vr(vLANE))
        A.v('v_lshl_or_b32', vr(rr), vr(cc), 3, vr(rr))
        A.v('v_bfe_u32', vr(rb), vr(vLANE), 3, 1)
        A.v('v_lshlrev_b32', vr(rb), 1, vr(rb))
        A.v('v_xor_b32', vr(rb), vr(rb), vr(fb))
        A.s('s_lshl_b32', sr(sT0), sr(sFH), 1)
        A.v('v_xor_b32', vr(rb), sr(sT0), vr(rb))
        A.v('v_lshl_or_b32', vr(vWR[2]), vr(rb), 5, vr(rr))
        A.v('v_lshl_add_u32', vr(vWR[0]), vr(fb), 13, vr(vWR[2]))
        A.v('v_xor_b32', vr(vWR[1]), 32, vr(vWR[0]))
        A.s('s_lshl_b32', sr(sT0), sr(sFH), 7)
        A.s('s_add_u32', sr(sT0), sr(sT0), hex(LDS_CS))
        A.v('v_lshlrev_b32', vr(vCS), 4, vr(hh))
        A.v('v_add_u32', vr(vCS), sr(sT0), vr(vCS))
        self.set_poll(sI, sJ, WS_FJ)
        acc, tm, mean = ACC1 + 24, ACC1 + 25, ACC1 + 26
        U = ACC1 + 28
        A.wait(vm=tok_stats)
        A.v('v_mov_b32', vr(acc), 0)
        for k in range(4):
            A.v('v_dot2c_f32_bf16', vr(acc), '0x3f803f80', vr(R0 + k))
        A.nop(3)
        self.reduce64(acc, tm)
        A.v('v_mul_f32', vr(mean), fhex(1.0 / 448), vr(acc))
        for k in range(4):
            A.v('v_lshlrev_b32', vr(U + 2 * k), 16, vr(R0 + k))
            A.v('v_and_b32', vr(U + 2 * k + 1), '0xffff0000', vr(R0 + k))
        A.v('v_mov_b32', vr(acc), 0)
        for k in range(8):
            A.v('v_sub_f32', vr(U + k), vr(U + k), vr(mean))
        for k in range(8):
            A.v('v_fmac_f32', vr(acc), vr(U + k), vr(U + k))
        A.v('v_cmp_gt_u32', 'vcc', 56, vr(vLANE))
        A.v('v_cndmask_b32', vr(acc), 0, vr(acc), 'vcc')
        self.reduce64(acc, tm)
        A.v('v_mov_b32', vr(tm), fhex(1e-5))
        A.v('v_fmac_f32', vr(tm), fhex(1.0 / 448), vr(acc))
        A.v('v_rsq_f32', vr(mean + 1), vr(tm))
        A.v('v_cmp_eq_u32', 'vcc', 0, vr(vLANE))
        A.v('v_mov_b32', vr(tm), hex(OOB))
        A.v('v_cndmask_b32', vr(tm), vr(tm), vr(vLANE), 'vcc')
        A.s('s_lshl_b32', sr(sT0), sr(sCNT), 3)
        A.s('s_add_u32', sr(sT0), sr(sT0), WS_STATS)
        assert mean % 2 == 0
        A.bstore(2, mean, tm, SWS, sr(sT0), mods='sc1')
        E = ACC1 + 36
        A.wait(vm=tok_cs)
        A.s('s_mov_b32', sr(sT0), '0x00003f80')
        A.s('s_mov_b32', sr(sT1), '0x3f800000')
        for k in range(4):
            A.v('v_dot2_f32_bf16', vr(E + 2 * k), vr(C0 + k), sr(sT0), 0)
            A.v('v_dot2_f32_bf16', vr(E + 2 * k + 1), vr(C0 + k), sr(sT1), 0)
        A.nop(3)
        for q in range(1, 4):
            for k in range(4):
                A.v('v_dot2c_f32_bf16', vr(E + 2 * k), sr(sT0), vr(C0 + 4 * q + k))
                A.v('v_dot2c_f32_bf16', vr(E + 2 * k + 1), sr(sT1), vr(C0 + 4 * q + k))
        A.nop(3)
        for k in range(8):
            A.v('v_add_f32', vr(E + k), vr(E + k), vr(E + k), mods='row_ror:8')
        for k in range(4):
            A.v('v_permlane16_swap_b32', vr(E + 2 * k), vr(E + 2 * k + 1))
        for k in range(4):
            A.v('v_add_f32', vr(E + 2 * k), vr(E + 2 * k), vr(E + 2 * k + 1))
        A.v('v_permlane32_swap_b32', vr(E), vr(E + 2))
        A.v('v_permlane32_swap_b32', vr(E + 4), vr(E + 6))
        A.v('v_add_f32', vr(E), vr(E), vr(E + 2))
        A.v('v_add_f32', vr(E + 4), vr(E + 4), vr(E + 6))
        a0, a1 = E + 1, E + 2
        A.v('v_and_b32', vr(a0), 8, vr(vLANE))
        A.v('v_cmp_ne_u32', 'vcc', 0, vr(a0))
        A.v('v_lshlrev_b32', vr(a0), 1, vr(a0))
        A.v('v_cndmask_b32', vr(E), vr(E), vr(E + 4), 'vcc')
        A.v('v_and_b32', vr(a1), 7, vr(vLANE))
        A.v('v_lshl_or_b32', vr(a0), vr(a1), 5, vr(a0))
        A.v('v_lshrrev_b32', vr(a1), 5, vr(vLANE))
        A.v('v_lshl_or_b32', vr(a0), vr(a1), 3, vr(a0))
        A.v('v_bfe_u32', vr(a1), vr(vLANE), 4, 1)
        A.v('v_lshl_or_b32', vr(a0), vr(a1), 2, vr(a0))
        A.s('s_lshl4_add_u32', sr(sT0), sr(sJ), sr(sI))
        A.s('s_mul_i32', sr(sT0), sr(sT0), 5)
        A.s('s_add_u32', sr(sT0), sr(sT0), sr(sWAVE))
        A.s('s_lshl_b32', sr(sT0), sr(sT0), 8)
        A.s('s_add_u32', sr(sT0), sr(sT0), WS_CSUM)
        A.s('s_cmp_lt_u32', sr(sWAVE), 5)
        A.s('s_cselect_b32', sr(sT0), sr(sT0), hex(OOB))
        self.tok_st1 = A.bstore(1, E, a0, SWS, sr(sT0), mods='sc1')
        Lnl2 = A.newlabel('L_nolead')
        A.s('s_lshl_b32', sr(sT0), 's2', 3)
        A.s('s_add_u32', sr(sT0), sr(sT0), sr(sWAVE))
        A.s('s_cmp_lg_u32', sr(sT0), 7)
        A.branch('s_cbranch_scc1', Lnl2)
        A.cond_depth += 1
        A.raw(f's_waitcnt vmcnt({min(63, A.vm_issued - tok_cs - 1)})', 'wait')
        for k in range(8):
            A.v('v_lshrrev_b32', vr(FL + k), 3, vr(FL + k))
        A.v('v_readfirstlane_b32', sr(sT0), vr(FL))
        Lg = A.newlabel('L_gen')
        A.label(Lg)
        A.s('s_add_u32', sr(sT0), sr(sT0), 1)
        A.s('s_and_b32', sr(sT0), sr(sT0), '0x1fffffff')
        A.s('s_mov_b64', sr(sM0, 2), 0)
        for k in range(8):
            A.v('v_cmp_eq_u32', 'vcc', sr(sT0), vr(FL + k))
            A.s('s_or_b64', sr(sM0, 2), sr(sM0, 2), 'vcc')
        A.s('s_cmp_lg_u64', sr(sM0, 2), 0)
        A.branch('s_cbranch_scc1', Lg)
        A.s('s_lshl_b32', sr(sT0), sr(sT0), 1)
        A.s('s_or_b32', sr(sT0), sr(sT0), 1)
        A.v('v_mov_b32', vr(FL), sr(sT0))
        A.bstore(1, FL, tm, SDBG, 0, mods='sc1')
        A.cond_depth -= 1
        A.label(Lnl2)
        A.v('v_mov_b32', vr(TMP + 15), 0)
        self.tok_gen = A.bload(1, vPOLL, TMP + 15, SDBG, 0, mods='sc1')

    def set_poll(self, sa, sb, offb):
        A = self.A
        A.s('s_lshl_b32', sr(sT0), sr(sa), 7)
        A.s('s_lshl_b32', sr(sT1), sr(sb), 7)
        if offb:
            A.s('s_add_u32', sr(sT1), sr(sT1), offb)
        A.v('v_and_b32', vr(vPOFF), 16, vr(vLANE))
        A.v('v_cmp_ne_u32', 'vcc', 0, vr(vPOFF))
        A.v('v_mov_b32', vr(vPOFF), sr(sT0))
        A.v('v_mov_b32', vr(self.ptmp), sr(sT1))
        A.v('v_cndmask_b32', vr(vPOFF), vr(vPOFF), vr(self.ptmp), 'vcc')
        A.v('v_and_b32', vr(self.ptmp), 15, vr(vLANE))
        A.v('v_lshl_add_u32', vr(vPOFF), vr(self.ptmp), 2, vr(vPOFF))

    def gen_check(self):
        A = self.A
        A.wait(vm=self.tok_gen)
        Lok, Lspin = A.newlabel('L_gok'), A.newlabel('L_gspin')
        A.s('s_mov_b32', sr(sCNT), 200000)
        A.label(Lspin)
        A.v('v_readfirstlane_b32', sr(sGEN8), vr(vPOLL))
        A.s('s_cmp_lg_u32', sr(sGEN8), 0)
        A.branch('s_cbranch_scc1', Lok)
        A.cond_depth += 1
        A.v('v_mov_b32', vr(vPOLL), 0)
        A.bload(1, vPOLL, vPOLL, SDBG, 0, mods='sc1')
        A.s('s_sub_u32', sr(sCNT), sr(sCNT), 1)
        A.wait_all(lgkm=False)
        A.s('s_cmp_lg_u32', sr(sCNT), 0)
        A.branch('s_cbranch_scc1', Lspin)
        A.cond_depth -= 1
        A.label(Lok)
        A.s('s_lshr_b32', sr(sGEN8), sr(sGEN8), 1)
        A.s('s_lshl_b32', sr(sGEN8), sr(sGEN8), 3)

    def p1_reads(self, n, ks):
        A = self.A
        toks = []
        wset = WF + 12 * (ks & 1)
        if n < 7:
            xa = self.items[('x', n)].addr
            o = self.gx.off(xa, 16384)
            toks.append(A.dsread('ds_read_b128', XF + 4 * (4 * n + ks), 4, vXR[ks], o))
        ga = self.items[('gu', n)].addr
        if n >= 7 and self.light2:
            oq = self.gq.off(ga, 8192)
            for tr in range(2):
                toks.append(A.dsread('ds_read_b64_tr_b16', wset + 2 * tr, 2, vWR[2], oq + ks * 2048 + tr * 512))
            return toks[-1]
        og = self.gw.off(ga, 16384)
        for T in range(2):
            for tr in range(2):
                toks.append(A.dsread('ds_read_b64_tr_b16', wset + 4 * T + 2 * tr, 2, vWR[T], og + ks * 2048 + tr * 512))
        if n < 7:
            qa = self.items[('q', n)].addr
            oq = self.gq.off(qa, 8192)
            for tr in range(2):
                toks.append(A.dsread('ds_read_b64_tr_b16', wset + 8 + 2 * tr, 2, vWR[2], oq + ks * 2048 + tr * 512))
        return toks[-1]

    def step_items(self, n):
        return [('x', n), ('gu', n), ('q', n)] if n < 7 else [('gu', n)]

    def fill(self, k):
        self.flush_dma(1)
        while k > 0 and self.fillers:
            f = self.fillers.pop(0)
            r = f()
            k -= (r if isinstance(r, int) else 1)

    def phase1_steps(self, n0, n1, hooks):
        A = self.A
        for n in range(n0, n1):
            A.comment(f'---- phase1 step {n}')
            if ('start', n) in hooks:
                hooks[('start', n)]()
            ntile = 3 if n < 7 else (1 if self.light2 else 2)
            acc = ACC1 if n < 7 else ACC2
            for ks in range(4):
                cur = self.rtok
                if ks < 3:
                    self.rtok = self.p1_reads(n, ks + 1)
                    A.wait(ds=cur)
                else:
                    self.flush_dma()
                    if ('drain', n + 1) in hooks:
                        while self.fillers:
                            self.fillers.pop(0)()
                    if n + 1 < 14:
                        need = [self.items[k].tok for k in self.step_items(n + 1)]
                        assert all(t is not None for t in need), (n, need)
                        extra = hooks.get(('vm', n + 1))
                        if extra:
                            need = need + extra()
                        A.wait(vm=need, ds=A.ds_issued - 1)
                        A.barrier()
                        for k in self.step_items(n):
                            self.free_item(*k)
                        self.alloc_items(limit=self.o['max_dma_step'])
                        self.rtok = self.p1_reads(n + 1, 0)
                        if ('bar', n + 1) in hooks:
                            hooks[('bar', n + 1)]()
                    else:
                        A.wait(ds=cur)
                wset = WF + 12 * (ks & 1)
                kk = 4 * (n % 7) + ks
                for T in range(ntile):
                    first = (kk == 0)
                    A.mfma('32', acc + 16 * T, wset + 4 * T, XF + 4 * kk, None if first else acc + 16 * T)
                    self.fill(self.o['fill_per_mfma'])

    def epi_qkv(self, a, cs_lo, cs_hi, so_lo, off_lo, so_hi, off_hi, toks):
        A = self.A
        F = []
        st = {}
        def rd():
            st['t'] = [A.dsread('ds_read_b128', TMP + 0, 4, vCS, cs_lo), A.dsread('ds_read_b128', TMP + 4, 4, vCS, cs_lo + 32),
                       A.dsread('ds_read_b128', TMP + 8, 4, vCS, cs_hi), A.dsread('ds_read_b128', TMP + 12, 4, vCS, cs_hi + 32)]
            return 4
        F.append(rd)
        F.append(lambda: 5)
        F.append(lambda: A.wait(ds=st['t']))
        for i in range(16):
            F.append(lambda i=i: A.v('v_fmac_f32', vr(a + i), vr(vNEGM), vr(TMP + i)))
        for i in range(16):
            F.append(lambda i=i: A.v('v_mul_f32', vr(a + i), vr(vR), vr(a + i)))
        for k in range(8):
            F.append(lambda k=k: A.v('v_cvt_pk_bf16_f32', vr(a + k), vr(a + 2 * k), vr(a + 2 * k + 1)))
        F.append(lambda: toks.append(A.bstore(4, a, vL16, SWS, sr(so_lo), offset=off_lo, mods='sc1')))
        F.append(lambda: toks.append(A.bstore(4, a + 4, vL16, SWS, sr(so_hi), offset=off_hi, mods='sc1')))
        return F

    def epi_ffn(self, a, cs_g, cs_u, so, off, toks):
        A = self.A
        F = []
        st = {}
        def rd():
            st['t'] = [A.dsread('ds_read_b128', TMP + 0, 4, vCS, cs_g), A.dsread('ds_read_b128', TMP + 4, 4, vCS, cs_g + 32),
                       A.dsread('ds_read_b128', TMP + 8, 4, vCS, cs_u), A.dsread('ds_read_b128', TMP + 12, 4, vCS, cs_u + 32)]
            return 4
        F.append(rd)
        F.append(lambda: 5)
        F.append(lambda: A.wait(ds=st['t']))
        for h in range(2):
            R = range(4 * h, 4 * h + 4)
            for i in R:
                F.append(lambda i=i: A.v('v_fmac_f32', vr(a + i), vr(vNEGM), vr(TMP + i)))
            for i in R:
                F.append(lambda i=i: A.v('v_mul_f32', vr(TMP + i), vr(vNRL), vr(a + i)))
            for i in R:
                F.append(lambda i=i: (A.v('v_exp_f32', vr(TMP + i), vr(TMP + i)), 2)[1])
                F.append(lambda i=i: A.v('v_fmac_f32', vr(a + 8 + i), vr(vNEGM), vr(TMP + 8 + i)))
            for i in R:
                F.append(lambda i=i: A.v('v_fma_f32', vr(TMP + i), vr(TMP + i), vr(vVV), vr(vVV)))
            for i in R:
                F.append(lambda i=i: (A.v('v_rcp_f32', vr(TMP + i), vr(TMP + i)), 2)[1])
                F.append(lambda i=i: A.v('v_mul_f32', vr(a + i), vr(a + i), vr(a + 8 + i)))
            for i in R:
                F.append(lambda i=i: A.v('v_mul_f32', vr(a + i), vr(a + i), vr(TMP + i)))
        for k in range(4):
            F.append(lambda k=k: A.v('v_cvt_pk_bf16_f32', vr(a + k), vr(a + 2 * k), vr(a + 2 * k + 1)))
        F.append(lambda: toks.append(A.bstore(4, a, vL16, SWS, sr(so), offset=off, mods='sc1')))
        return F

    def coop_loads(self):
        A = self.A
        t = self.ptmp
        A.v('v_and_b32', vr(t), 31, vr(vLANE))
        A.v('v_lshlrev_b32', vr(t), 3, vr(t))
        A.s('s_lshl_b32', sr(sT0), sr(sG), 8)
        A.s('s_add_u32', sr(sT0), sr(sT0), WS_STATS)
        A.bload(2, vNEGM, t, SWS, sr(sT0), mods='sc1')
        A.v('v_lshrrev_b32', vr(t), 4, vr(vLANE))
        A.v('v_mul_u32_u24', vr(t), 1280, vr(t))
        A.v('v_and_b32', vr(t + 1), 15, vr(vLANE))
        A.v('v_lshl_add_u32', vr(t), vr(t + 1), 4, vr(t))
        A.s('s_mul_i32', sr(sT0), sr(sJ), 16 * 1280)
        A.s('s_lshl_b32', sr(sT1), sr(sWAVE), 8)
        A.s('s_add_u32', sr(sT0), sr(sT0), sr(sT1))
        A.s('s_add_u32', sr(sT0), sr(sT0), WS_CSUM)
        A.s('s_cmp_lt_u32', sr(sWAVE), 5)
        A.s('s_cselect_b32', sr(sT0), sr(sT0), hex(OOB))
        for n in range(4):
            self.tok_coop = A.bload(4, TMP + 4 * n, t, SWS, sr(sT0), mods='sc1')
            if n < 3:
                A.s('s_add_u32', sr(sT0), sr(sT0), 4 * 1280)

    def coop_reduce(self):
        A = self.A
        F = []
        t = self.ptmp
        F.append(lambda: A.wait(vm=self.tok_coop))
        for n in range(1, 4):
            for u in range(4):
                F.append(lambda n=n, u=u: A.v('v_add_f32', vr(TMP + u), vr(TMP + u), vr(TMP + 4 * n + u)))
        F.append(lambda: A.v('v_mul_f32', vr(vNRL), fhex(-LOG2E), vr(vR)))
        F.append(lambda: A.v('v_mul_f32', vr(vVV), vr(vR), vr(vR)))
        F.append(lambda: A.v('v_sub_f32', vr(vNEGM), 0, vr(vNEGM)))
        F.append(lambda: A.v('v_rcp_f32', vr(vVV), vr(vVV)))
        F.append(lambda: A.v('v_permlane16_swap_b32', vr(TMP), vr(TMP + 1)))
        F.append(lambda: A.v('v_permlane16_swap_b32', vr(TMP + 2), vr(TMP + 3)))
        F.append(lambda: A.v('v_add_f32', vr(TMP), vr(TMP), vr(TMP + 1)))
        F.append(lambda: A.v('v_add_f32', vr(TMP + 2), vr(TMP + 2), vr(TMP + 3)))
        F.append(lambda: A.v('v_and_b32', vr(t), 15, vr(vLANE)))
        F.append(lambda: A.v('v_lshrrev_b32', vr(t + 1), 5, vr(vLANE)))
        F.append(lambda: A.v('v_permlane32_swap_b32', vr(TMP), vr(TMP + 2)))
        F.append(lambda: A.v('v_lshlrev_b32', vr(t), 4, vr(t)))
        F.append(lambda: A.v('v_lshl_or_b32', vr(t), vr(t + 1), 3, vr(t)))
        F.append(lambda: A.v('v_add_f32', vr(TMP), vr(TMP), vr(TMP + 2)))
        F.append(lambda: A.v('v_bfe_u32', vr(t + 1), vr(vLANE), 4, 1))
        F.append(lambda: A.v('v_lshl_or_b32', vr(t), vr(t + 1), 2, vr(t)))
        def fin():
            A.s('s_lshl_b32', sr(sT0), sr(sWAVE), 8)
            A.s('s_add_u32', sr(sT0), sr(sT0), hex(LDS_CS))
            A.v('v_add_u32', vr(t), sr(sT0), vr(t))
            A.dswrite('ds_write_b32', t, TMP, 1)
        F.append(fin)
        return F

    def att_dma(self):
        A = self.A
        base = self.items[('att', 0)].addr
        t = self.ptmp
        A.s('s_and_b32', sr(sT0), sr(sJ), 3)
        A.s('s_lshl2_add_u32', sr(sT0), sr(sI), sr(sT0))
        A.s('s_lshr_b32', sr(sT1), sr(sJ), 2)
        A.s('s_mul_i32', sr(sT1), sr(sT1), 7)
        A.s('s_mul_i32', sr(sT2), sr(sT0), 84)
        A.s('s_add_u32', sr(sT2), sr(sT2), sr(sT1))
        A.s('s_lshl_b32', sr(sT2), sr(sT2), 10)
        A.s('s_add_u32', sr(sT2), sr(sT2), hex(WS_QKV))
        A.s('s_mul_i32', sr(sAO), sr(sT0), 28)
        A.s('s_add_u32', sr(sAO), sr(sAO), sr(sT1))
        A.s('s_add_u32', sr(sAO), sr(sAO), sr(sWAVE))
        A.s('s_lshl_b32', sr(sAO), sr(sAO), 10)
        A.s('s_add_u32', sr(sAO), sr(sAO), hex(WS_O))
        A.s('s_cmp_lt_u32', sr(sWAVE), 7)
        A.s('s_cselect_b32', sr(sAO), sr(sAO), hex(OOB))
        A.s('s_add_u32', sr(sT3), sr(sT2), sr(sW1024))
        Ls = A.newlabel('L_att7')
        A.s('s_cmp_eq_u32', sr(sWAVE), 7)
        A.branch('s_cbranch_scc1', Ls)
        A.cond_depth += 1
        for m in range(3):
            A.s('s_add_u32', 'm0', sr(sW1024), hex(base + m * 7168))
            A.bload_lds(vL16, SWS, sr(sT3), mods='sc1')
            if m < 2:
                A.s('s_add_u32', sr(sT3), sr(sT3), 28 * 1024)
        A.cond_depth -= 1
        A.label(Ls)
        A.v('v_lshrrev_b32', vr(t), 4, vr(vLANE))
        A.v('v_lshlrev_b32', vr(t), 9, vr(t))
        A.v('v_and_b32', vr(t + 1), 15, vr(vLANE))
        A.v('v_lshl_add_u32', vr(t), vr(t + 1), 4, vr(t))
        A.v('v_add_u32', vr(t), 256, vr(t))
        A.s('s_mul_i32', sr(sT3), sr(sFH), 28 * 1024)
        A.s('s_add_u32', sr(sT3), sr(sT3), sr(sT2))
        A.s('s_lshl_b32', sr(sT1), sr(sTG), 11)
        A.s('s_add_u32', sr(sT3), sr(sT3), sr(sT1))
        A.s('s_add_u32', sr(sT3), sr(sT3), hex((28 - 84) * 1024 & 0xffffffff))
        A.s('s_cmp_eq_u32', sr(sT0), 0)
        A.s('s_cselect_b32', sr(sT3), hex(OOB), sr(sT3))
        A.s('s_add_u32', 'm0', sr(sW1024), hex(base + 3 * 7168))
        self.tok_att = A.bload_lds(t, SWS, sr(sT3), mods='sc1')
        A.s('s_mov_b32', sr(sQ0), sr(sT0))

    def attention(self, mid_hook=None):
        A = self.A
        base = self.items[('att', 0)].addr
        QA, KM, VM, KH, VH = base, base + 7168, base + 14336, base + 21504, base + 21504 + 4096
        R = ACC1
        idx, g, t0, t1 = R, R + 1, R + 2, R + 3
        o1, o2 = R + 4, R + 5
        aq1, aq2, ah1, ah2 = R + 6, R + 7, R + 8, R + 9
        Qf, K0, K1 = R + 12, R + 16, R + 20
        S0, S1 = R + 24, R + 28
        V0, V1 = R + 32, R + 36
        O0, O1 = R + 40, R + 44
        vt = [ACC2 + k for k in range(8)]
        A.s('s_lshr_b32', sr(sT0), sr(sWAVE), 1)
        A.s('s_mul_i32', sr(sT0), sr(sT0), 7)
        A.s('s_and_b32', sr(sT1), sr(sWAVE), 1)
        A.v('v_and_b32', vr(idx), 15, vr(vLANE))
        A.v('v_lshrrev_b32', vr(g), 4, vr(vLANE))

        def runoff(dst, Rr, tmp):
            A.v('v_lshrrev_b32', vr(dst), 2, vr(Rr))
            A.v('v_lshlrev_b32', vr(dst), 10, vr(dst))
            A.v('v_and_b32', vr(tmp), 1, vr(Rr))
            A.v('v_lshl_or_b32', vr(dst), vr(tmp), 9, vr(dst))
            A.v('v_bfe_u32', vr(tmp), vr(Rr), 1, 1)
            A.v('v_lshl_or_b32', vr(dst), vr(tmp), 3, vr(dst))

        def halo_of(dst, src, tmp):
            A.v('v_and_b32', vr(tmp), 8, vr(src))
            A.v('v_lshrrev_b32', vr(dst), 9, vr(src))
            A.v('v_lshl_or_b32', vr(dst), vr(dst), 8, vr(tmp))

        A.v('v_lshl_add_u32', vr(t0), vr(g), 1, sr(sT0))
        runoff(o1, t0, t1)
        A.v('v_add_u32', vr(t0), 1, vr(t0))
        A.s('s_add_u32', sr(sT2), sr(sT0), 6)
        A.v('v_min_u32', vr(t0), sr(sT2), vr(t0))
        runoff(o2, t0, t1)
        A.v('v_lshl_add_u32', vr(t0), vr(idx), 1, sr(sT1))
        A.v('v_lshlrev_b32', vr(t0), 4, vr(t0))
        A.v('v_add_u32', vr(aq1), vr(o1), vr(t0))
        A.v('v_add_u32', vr(aq2), vr(o2), vr(t0))
        A.v('v_add_u32', vr(aq1), hex(base), vr(aq1))
        A.v('v_add_u32', vr(aq2), hex(base), vr(aq2))
        tq = [A.dsread('ds_read_b64', Qf, 2, aq1, 0), A.dsread('ds_read_b64', Qf + 2, 2, aq2, 0),
              A.dsread('ds_read_b64', K1, 2, aq1, KM - base), A.dsread('ds_read_b64', K1 + 2, 2, aq2, KM - base)]
        halo_of(ah1, o1, t1)
        halo_of(ah2, o2, t1)
        A.v('v_and_b32', vr(t0), 255, vr(t0))
        A.v('v_add_u32', vr(ah1), vr(ah1), vr(t0))
        A.v('v_add_u32', vr(ah2), vr(ah2), vr(t0))
        A.v('v_add_u32', vr(ah1), hex(KH), vr(ah1))
        A.v('v_add_u32', vr(ah2), hex(KH), vr(ah2))
        tk0 = [A.dsread('ds_read_b64', K0, 2, ah1, 0), A.dsread('ds_read_b64', K0 + 2, 2, ah2, 0)]
        rr, cc, va0, va1, vh0, vh1 = vt[0], vt[1], vt[2], vt[3], vt[4], vt[5]
        A.v('v_lshrrev_b32', vr(rr), 2, vr(vLANE))
        A.v('v_lshl_add_u32', vr(rr), vr(rr), 1, sr(sT1))
        A.v('v_lshlrev_b32', vr(rr), 4, vr(rr))
        A.v('v_and_b32', vr(cc), 3, vr(vLANE))
        A.v('v_add_u32', vr(cc), sr(sT0), vr(cc))
        runoff(va0, cc, t1)
        A.v('v_add_u32', vr(cc), 4, vr(cc))
        A.v('v_min_u32', vr(cc), sr(sT2), vr(cc))
        runoff(va1, cc, t1)
        halo_of(vh0, va0, t1)
        halo_of(vh1, va1, t1)
        A.v('v_add_u32', vr(va0), vr(va0), vr(rr))
        A.v('v_add_u32', vr(va1), vr(va1), vr(rr))
        A.v('v_add_u32', vr(va0), hex(VM), vr(va0))
        A.v('v_add_u32', vr(va1), hex(VM), vr(va1))
        A.v('v_and_b32', vr(rr), 255, vr(rr))
        A.v('v_add_u32', vr(vh0), vr(vh0), vr(rr))
        A.v('v_add_u32', vr(vh1), vr(vh1), vr(rr))
        A.v('v_add_u32', vr(vh0), hex(VH), vr(vh0))
        A.v('v_add_u32', vr(vh1), hex(VH), vr(vh1))
        tv = [A.dsread('ds_read_b64_tr_b16', V0, 2, vh0, 0), A.dsread('ds_read_b64_tr_b16', V0 + 2, 2, va0, 0),
              A.dsread('ds_read_b64_tr_b16', V1, 2, vh1, 0), A.dsread('ds_read_b64_tr_b16', V1 + 2, 2, va1, 0)]
        NEG = '0xf149f2ca'
        A.v('v_lshlrev_b32', vr(t0), 2, vr(g))
        A.v('v_sub_u32', vr(t0), vr(t0), vr(idx))
        A.v('v_mov_b32', vr(t1), NEG)
        A.s('s_cmp_eq_u32', sr(sQ0), 0)
        A.s('s_cselect_b32', sr(sT3), 64, 9)
        for i in range(4):
            A.v('v_cmp_le_i32', 'vcc', sr(sT3), vr(t0))
            A.v('v_cndmask_b32', vr(S0 + i), vr(t1), 0, 'vcc')
            if i < 3:
                A.s('s_sub_u32', sr(sT3), sr(sT3), 1)
        for i in range(4):
            A.v('v_add_u32', vr(o1), 7 + i, vr(t0))
            A.v('v_cmp_ge_u32', 'vcc', 7, vr(o1))
            A.v('v_cndmask_b32', vr(S1 + i), vr(t1), 0, 'vcc')
        A.v('v_cmp_gt_u32', 'vcc', 48, vr(vLANE))
        A.wait(ds=tq)
        A.v('v_cndmask_b32', vr(Qf + 2), 0, vr(Qf + 2), 'vcc')
        A.v('v_cndmask_b32', vr(Qf + 3), 0, vr(Qf + 3), 'vcc')
        A.mfma('16', S1, K1, Qf, S1)
        A.wait(ds=tk0)
        A.mfma('16', S0, K0, Qf, S0)
        if mid_hook:
            mid_hook()
        mx, sm = t0, o1
        A.v('v_max3_f32', vr(mx), vr(S1), vr(S1 + 1), vr(S1 + 2))
        A.v('v_max3_f32', vr(mx), vr(mx), vr(S1 + 3), vr(S0))
        A.v('v_max3_f32', vr(mx), vr(mx), vr(S0 + 1), vr(S0 + 2))
        A.v('v_max_f32', vr(mx), vr(mx), vr(S0 + 3))
        self.reduce_rows(mx, t1, 'v_max_f32')
        c = (28 ** -0.5) * LOG2E
        A.s('s_mov_b32', sr(sT3), fhex(c))
        A.v('v_mul_f32', vr(mx), fhex(-c), vr(mx))
        for k in range(8):
            A.v('v_fma_f32', vr(S0 + k), vr(S0 + k), sr(sT3), vr(mx))
        for k in range(8):
            A.v('v_exp_f32', vr(S0 + k), vr(S0 + k))
        A.v('v_add_f32', vr(sm), vr(S0), vr(S0 + 1))
        for k in range(2, 8):
            A.v('v_add_f32', vr(sm), vr(sm), vr(S0 + k))
        Pf = Qf
        for k in range(4):
            A.v('v_cvt_pk_bf16_f32', vr(Pf + k), vr(S0 + 2 * k), vr(S0 + 2 * k + 1))
        A.wait(ds=tv)
        A.mfma('16', O0, V0, Pf, None)
        A.mfma('16', O1, V1, Pf, None)
        self.reduce_rows(sm, t1, 'v_add_f32')
        A.v('v_rcp_f32', vr(sm), vr(sm))
        A.v('v_add_u32', vr(cc), sr(sT0), vr(g))
        runoff(va0, cc, t1)
        A.v('v_add_u32', vr(cc), 4, vr(cc))
        runoff(va1, cc, t1)
        A.v('v_lshl_add_u32', vr(t0), vr(idx), 1, sr(sT1))
        A.v('v_lshlrev_b32', vr(t0), 4, vr(t0))
        A.v('v_add_u32', vr(t0), hex(QA), vr(t0))
        A.v('v_add_u32', vr(va0), vr(va0), vr(t0))
        A.v('v_add_u32', vr(va1), vr(va1), vr(t0))
        A.v('v_mov_b32', vr(t1), hex(LDS_CS + 1536))
        A.v('v_cmp_gt_u32', 'vcc', 48, vr(vLANE))
        A.v('v_cndmask_b32', vr(va1), vr(t1), vr(va1), 'vcc')
        for k in range(8):
            A.v('v_mul_f32', vr(O0 + k), vr(O0 + k), vr(sm))
        for k in range(4):
            A.v('v_cvt_pk_bf16_f32', vr(O0 + k), vr(O0 + 2 * k), vr(O0 + 2 * k + 1))
        A.dswrite('ds_write_b64', va0, O0, 2)
        self.tok_ow = A.dswrite('ds_write_b64', va1, O0 + 2, 2)

    def build(self):
        A = self.A
        self.ptmp = 46
        self.ptmp = TMP + 8
        self.fillers = []
        self.light2 = False
        self.prologue()
        self.gx = AddrGroup(A, vXR)
        self.gw = AddrGroup(A, vWR[:2])
        self.gq = AddrGroup(A, vWR[2:])
        A.wait(vm=[self.items[k].tok for k in self.step_items(0)])
        A.barrier()
        self.rtok = self.p1_reads(0, 0)
        self.ptmp = ACC2
        hooks = {}
        hooks[('vm', 2)] = lambda: [self.tok_st1, self.tok_gen]
        def bar2():
            self.gen_check()
            self.publish(1)
        hooks[('bar', 2)] = bar2
        def st5():
            self.tok_poll = self.poll_issue()
        hooks[('start', 5)] = st5
        def st6():
            self.poll_check(self.tok_poll, 1)
            self.coop_loads()
            A.s('s_sub_u32', sr(sT2), sr(sI), 1)
            A.s('s_max_i32', sr(sT2), sr(sT2), 0)
            A.s('s_and_b32', sr(sT3), sr(sJ), 3)
            A.s('s_cmp_eq_u32', sr(sT3), 0)
            A.s('s_cselect_b32', sr(sT2), sr(sT2), sr(sI))
            self.set_poll(sI, sT2, 0)
        hooks[('start', 6)] = st6
        self.phase1_steps(0, 7, hooks)
        self.ptmp = WF + 8
        import copy
        Llight, Ljoin = 'L_light', 'L_join'
        A.s('s_cmp_eq_u32', sr(sLIGHT), 1)
        A.branch('s_cbranch_scc1', Llight)
        snap = self.snapshot()
        self.pass2(light=False)
        A.branch('s_branch', Ljoin)
        final = self.snapshot()
        self.restore(snap)
        A.label(Llight)
        self.light2 = True
        A.wait(ds=self.rtok)
        self.rtok = self.p1_reads(7, 0)
        self.pass2(light=True)
        self.light2 = False
        A.wait_all()
        assert {k: v.addr for k, v in self.items.items()} == {k: a for k, (a, t) in final['items'].items()}
        assert len(self.dmaq) == len(final['dmaq']) == 0
        self.restore(final)
        A.label(Ljoin)
        self.tail()
        A.label('L_end')
        A.raw('s_endpgm', 'other')

    def snapshot(self):
        import copy
        A = self.A
        return dict(free=list(self.lds.free), queue=list(self.queue), dmaq=list(self.dmaq),
                    items={k: (v.addr, v.tok) for k, v in self.items.items()},
                    cnt=(A.vm_issued, A.vm_done, A.ds_issued, A.ds_done, A.smem_pending),
                    bases=(self.gx.base, self.gw.base, self.gq.base), rtok=self.rtok,
                    attrs={k: getattr(self, k, None) for k in ('tok_poll', 'tok_att', 'tok_hb', 'tok_coop', 'ptmp')})

    def restore(self, s):
        A = self.A
        self.lds.free = list(s['free'])
        self.queue = list(s['queue'])
        self.dmaq = list(s['dmaq'])
        for k, (a, t) in s['items'].items():
            self.items[k].addr, self.items[k].tok = a, t
        A.vm_issued, A.vm_done, A.ds_issued, A.ds_done, A.smem_pending = s['cnt']
        self.gx.base, self.gw.base, self.gq.base = s['bases']
        self.rtok = s['rtok']
        for k, v in s['attrs'].items():
            setattr(self, k, v)

    def pass2(self, light):
        A = self.A
        hooks = {}
        tq, th = [], []
        def st7():
            self.fillers += self.coop_reduce()
        hooks[('start', 7)] = st7
        hooks[('drain', 8)] = True
        if not light:
            hooks[('drain', 13)] = True
        def st8():
            assert not self.fillers, len(self.fillers)
            F = self.epi_qkv(ACC1 + 32, 512, 512 + 64, sQ2, 0, sQ2, 1024, tq)
            for T in range(2):
                if light:
                    F += self.epi_qkv(ACC1 + 16 * T, 64 * T, 256 + 64 * T, sQ0, 1024 * T, sQ1, 1024 * T, tq)
                else:
                    F += self.epi_ffn(ACC1 + 16 * T, 64 * T, 256 + 64 * T, sHA, 1024 * T, th)
            self.fillers += F
        hooks[('start', 8)] = st8
        qstage = 12 if light else 10
        def vq():
            assert len(tq) == (6 if light else 2), tq
            return list(tq)
        if not light:
            hooks[('vm', qstage)] = vq
            hooks[('bar', qstage)] = lambda: self.publish(2)
        def v13():
            assert not self.fillers, len(self.fillers)
            return list(th) + list(tq)
        if not light:
            hooks[('vm', 13)] = v13
            hooks[('bar', 13)] = lambda: self.publish(3)
            def st12():
                self.tok_poll = self.poll_issue()
            hooks[('start', 12)] = st12
            def st13():
                self.poll_check(self.tok_poll, 2)
                self.att_dma()
            hooks[('start', 13)] = st13
        self.phase1_steps(7, 14, hooks)
        tb = []
        F = []
        if light:
            for f in self.fillers:
                f()
            self.fillers = []
            A.s('s_add_u32', sr(sQ2), sr(sQ0), 3 * 4096)
            A.s('s_cmp_eq_u32', sr(sJ), 14)
            A.s('s_cselect_b32', sr(sQ2), sr(sQ2), hex(OOB))
            F += self.fillers
            self.fillers = []
            F += self.epi_qkv(ACC2, 768, 768 + 64, sQ2, 0, sQ2, 1024, tb)
        else:
            A.s('s_add_u32', sr(sHA), sr(sHA), 56 * 1024)
            for T in range(2):
                F += self.epi_ffn(ACC2 + 16 * T, 768 + 64 * T, 1024 + 64 * T, sHA, 1024 * T, tb)
        for f in F:
            f()
        self.tok_hb = tb[-1]
        if light:
            A.wait_all()
            A.barrier()
            self.publish(3)
            self.tok_poll = self.poll_issue()
            self.poll_check(self.tok_poll, 2)
            self.att_dma()

    def tail(self):
        A = self.A
        self.ptmp = WF + 8
        A.s('s_lshr_b32', sr(sT2), sr(sMT), 1)
        self.set_poll(sT2, sT2, 0)
        self.tok_poll = self.poll_issue()
        A.wait(vm=self.tok_att, ds=A.ds_issued - 1)
        A.barrier()
        self.free_item('gu', 13)
        A.s('s_mul_i32', sr(sC3), sr(sFH), 7 * 32 * 896)
        A.s('s_mul_i32', sr(sT0), sr(sTG), 8 * 896)
        A.s('s_add_u32', sr(sC3), sr(sC3), sr(sT0))
        A.s('s_lshl_b32', sr(sT0), sr(sNT), 7)
        A.s('s_add_u32', sr(sC3), sr(sC3), sr(sT0))
        self.alloc_items()
        self.flush_dma()
        vAO = vXD0
        AF = XF
        OF = ACC2 + 8
        self.atok = {}

        def setup_a():
            A.v('v_lshrrev_b32', vr(vAO), 4, vr(vLANE))
            A.v('v_lshlrev_b32', vr(vAO), 9, vr(vAO))
            A.v('v_and_b32', vr(vXD1), 15, vr(vLANE))
            A.v('v_lshl_add_u32', vr(vAO), vr(vXD1), 4, vr(vAO))
            A.s('s_lshr_b32', sr(sT0), sr(sTG), 1)
            A.s('s_lshl1_add_u32', sr(sT0), sr(sMT), sr(sT0))
            A.s('s_and_b32', sr(sT1), sr(sTG), 1)
            A.s('s_lshl_b32', sr(sT1), sr(sT1), 8)
            A.s('s_mul_i32', sr(sHA), sr(sT0), 112 * 1024)
            A.s('s_add_u32', sr(sHA), sr(sHA), sr(sT1))
            A.s('s_mul_i32', sr(sT2), sr(sFH), 14 * 2048)
            A.s('s_add_u32', sr(sHA), sr(sHA), sr(sT2))
            A.s('s_add_u32', sr(sHA), sr(sHA), hex(WS_H))
            A.s('s_mul_i32', sr(sQ1), sr(sT0), 28 * 1024)
            A.s('s_add_u32', sr(sQ1), sr(sQ1), sr(sT1))
            A.s('s_mul_i32', sr(sT2), sr(sFH), 7 * 2048)
            A.s('s_add_u32', sr(sQ1), sr(sQ1), sr(sT2))
            A.s('s_add_u32', sr(sQ1), sr(sQ1), hex(WS_O))

        def load_h(part):
            for s in range(14):
                self.atok[14 * part + s] = A.bload(4, AF + 4 * (14 * part + s), vAO, SWS, sr(sHA), offset=2048 * (s & 1), mods='sc1')
                if s & 1:
                    A.s('s_add_u32', sr(sHA), sr(sHA), 4096)
            A.s('s_add_u32', sr(sHA), sr(sHA), 14 * 2048)

        def skip_if_no_p2(fn, cond=True):
            L = A.newlabel('L_nop2')
            A.s('s_cmp_eq_u32', sr(sP2), 0)
            A.branch('s_cbranch_scc1', L)
            fn()
            A.label(L)

        def mid():
            def f():
                self.poll_check(self.tok_poll, 3)
                setup_a()
                load_h(0)
            A.s('s_mov_b32', sr(sX0), sr(sT0)); A.s('s_mov_b32', sr(sX0 + 1), sr(sT1)); A.s('s_mov_b32', sr(sX0 + 2), sr(sT2))
            L = A.newlabel('L_nop2')
            L2 = A.newlabel('L_nop2b')
            A.s('s_cmp_eq_u32', sr(sP2), 0)
            A.branch('s_cbranch_scc1', L)
            f()
            A.branch('s_branch', L2)
            A.label(L)
            A.raw('s_waitcnt vmcnt(0)', 'wait')
            A.label(L2)
            A.s('s_mov_b32', sr(sT0), sr(sX0)); A.s('s_mov_b32', sr(sT1), sr(sX0 + 1)); A.s('s_mov_b32', sr(sT2), sr(sX0 + 2))

        self.attention(mid_hook=mid)
        A.wait(vm=self.tok_hb, ds=self.tok_ow)
        A.barrier()
        self.publish(4)
        base = self.items[('att', 0)].addr
        t = self.ptmp
        A.s('s_add_u32', sr(sT0), sr(sW1024), hex(base))
        A.v('v_add_u32', vr(t), sr(sT0), vr(vL16))
        tk = A.dsread('ds_read_b128', ACC1, 4, t, 0)
        A.wait(ds=tk)
        tok_o = A.bstore(4, ACC1, vL16, SWS, sr(sAO), mods='sc1')
        self.tok_poll = self.poll_issue()
        Lp2 = A.newlabel('L_p2')
        A.s('s_cmp_eq_u32', sr(sP2), 1)
        A.branch('s_cbranch_scc1', Lp2)
        A.cond_depth += 1
        A.wait_all()
        A.barrier()
        self.publish(5)
        A.cond_depth -= 1
        A.branch('s_branch', 'L_end')
        A.label(Lp2)
        if self.stop == 'att':
            A.wait_all()
            A.barrier()
            self.publish(5)
            return
        W2F = ACC1 + 4
        ACB = ACC1 + 36
        ACS = ACC1 + 52
        XR = ACC1 + 68
        OFR = [TMP, TMP + 4, TMP + 8, TMP + 12, WF, WF + 4, WF + 12]
        vTR = [vXR[0], vXR[1], vXR[2], vXR[3]]
        a0, a1 = WF + 16, WF + 17
        A.v('v_lshrrev_b32', vr(a0), 5, vr(vLANE))
        A.v('v_lshlrev_b32', vr(a0), 4, vr(a0))
        A.v('v_bfe_u32', vr(a1), vr(vLANE), 2, 3)
        A.v('v_add_u32', vr(a0), vr(a0), vr(a1))
        A.v('v_lshlrev_b32', vr(a0), 7, vr(a0))
        A.v('v_bfe_u32', vr(a1), vr(vLANE), 3, 2)
        A.v('v_lshl_or_b32', vr(a0), vr(a1), 5, vr(a0))
        A.v('v_and_b32', vr(a1), 3, vr(vLANE))
        A.v('v_lshl_or_b32', vr(a0), vr(a1), 3, vr(a0))
        A.s('s_lshl_b32', sr(sT0), sr(sFH), 12)
        A.v('v_add_u32', vr(vTR[0]), sr(sT0), vr(a0))
        for ct in range(1, 4):
            A.v('v_xor_b32', vr(vTR[ct]), 32 * ct, vr(vTR[0]))
        gt = AddrGroup(A, vTR)
        vOO = vWD0
        A.v('v_and_b32', vr(a0), 15, vr(vLANE))
        A.v('v_mul_u32_u24', vr(a0), 896, vr(a0))
        A.v('v_lshrrev_b32', vr(a1), 4, vr(vLANE))
        A.v('v_lshl_add_u32', vr(vOO), vr(a1), 3, vr(a0))
        A.s('s_lshl2_add_u32', sr(sT0), sr(sMT), sr(sTG))
        A.s('s_mul_i32', sr(sXO), sr(sT0), 16 * 896)
        A.s('s_lshl_b32', sr(sT0), sr(sNT), 7)
        A.s('s_add_u32', sr(sXO), sr(sXO), sr(sT0))
        A.s('s_lshl_b32', sr(sT0), sr(sFH), 6)
        A.s('s_add_u32', sr(sXO), sr(sXO), sr(sT0))
        A.bload(2, XR, vOO, SX, sr(sXO))
        tok_x = A.bload(2, XR + 2, vOO, SX, sr(sXO), offset=32)

        def reads(s):
            it = self.items[('w2', s)]
            o = gt.off(it.addr, 8192)
            ws = W2F + 16 * (s & 1)
            tk = None
            for ct in range(4):
                for tr in range(2):
                    tk = A.dsread('ds_read_b64_tr_b16', ws + 4 * ct + 2 * tr, 2, vTR[ct], o + tr * 1024)
            return tk

        P = self.o['p2_round']
        nround = (35 + P - 1) // P
        rt = None
        att_freed = False
        for rd in range(nround):
            steps = list(range(rd * P, min(35, (rd + 1) * P)))
            self.flush_dma()
            need = [self.items[('w2', s)].tok for s in steps]
            assert all(t is not None for t in need), (rd, need)
            if rd == 0:
                need.append(tok_o)
            A.wait(vm=need, ds=A.ds_issued - 1)
            A.barrier()
            if rd == 0:
                self.publish(5)
                self.free_item('att', 0)
            else:
                for s in range((rd - 1) * P, rd * P):
                    self.free_item('w2', s)
            self.alloc_items()
            nxt = reads(steps[0])
            if rd > 0:
                self.p2_mfma(steps[0] - 1, W2F, ACB, ACS, AF, OFR)
            self.flush_dma()
            if rd == self.o.get('hb_round', 1):
                self.poll_check(self.tok_poll, 4)
                load_h(1)
                self.tok_poll = self.poll_issue()
            if rd == self.o.get('o_round', 3):
                self.poll_check(self.tok_poll, 5)
                for s in range(7):
                    self.atok[28 + s] = A.bload(4, OFR[s], vAO, SWS, sr(sQ1), offset=2048 * (s & 1), mods='sc1')
                    if s & 1:
                        A.s('s_add_u32', sr(sQ1), sr(sQ1), 4096)
            for k, s in enumerate(steps):
                cur = nxt
                if k + 1 < len(steps):
                    nxt = reads(s + 1)
                    A.wait(ds=cur, vm=self.atok[s])
                    self.p2_mfma(s, W2F, ACB, ACS, AF, OFR)
                else:
                    A.wait(vm=self.atok[s])
                    if rd == nround - 1:
                        A.wait(ds=cur)
                        self.p2_mfma(s, W2F, ACB, ACS, AF, OFR)
        A.barrier()
        EX = 0
        t = WF + 16
        A.s('s_lshl_b32', sr(sT0), sr(sWAVE), 12)
        A.v('v_add_u32', vr(t), sr(sT0), vr(vL16))
        A.s('s_xor_b32', sr(sT0), sr(sT0), 4 << 12)
        A.v('v_add_u32', vr(t + 1), sr(sT0), vr(vL16))
        Lk1, Lk2 = A.newlabel('L_kh1'), A.newlabel('L_khj')
        RB, RS = W2F, W2F + 8
        A.s('s_cmp_eq_u32', sr(sFH), 1)
        A.branch('s_cbranch_scc1', Lk1)
        c0 = (A.ds_issued, A.ds_done)
        for own, snd, lab in ((0, 8, None), (8, 0, Lk1)):
            if lab:
                A.label(lab)
                A.ds_issued, A.ds_done = c0
            A.dswrite('ds_write_b128', t, ACB + snd, 4, EX)
            A.dswrite('ds_write_b128', t, ACB + snd + 4, 4, EX + 1024)
            A.dswrite('ds_write_b128', t, ACS + snd, 4, EX + 2048)
            A.dswrite('ds_write_b128', t, ACS + snd + 4, 4, EX + 3072)
            for k in range(8):
                A.v('v_mov_b32', vr(RB + k), vr(ACB + own + k))
                A.v('v_mov_b32', vr(RS + k), vr(ACS + own + k))
            if not lab:
                A.branch('s_branch', Lk2)
        A.label(Lk2)
        A.wait(ds=A.ds_issued - 1)
        A.barrier()
        PB, PS = W2F + 16, W2F + 24
        tk = [A.dsread('ds_read_b128', PB, 4, t + 1, EX), A.dsread('ds_read_b128', PB + 4, 4, t + 1, EX + 1024),
              A.dsread('ds_read_b128', PS, 4, t + 1, EX + 2048), A.dsread('ds_read_b128', PS + 4, 4, t + 1, EX + 3072)]
        XU = ACB
        A.wait(vm=tok_x)
        for k in range(4):
            A.v('v_lshlrev_b32', vr(XU + 2 * k), 16, vr(XR + k))
            A.v('v_and_b32', vr(XU + 2 * k + 1), '0xffff0000', vr(XR + k))
        A.wait(ds=tk[1])
        for k in range(8):
            A.v('v_add_f32', vr(RB + k), vr(RB + k), vr(PB + k))
        for k in range(8):
            A.v('v_mul_f32', vr(PB + k), fhex(-LOG2E), vr(RB + k))
        for k in range(8):
            A.v('v_exp_f32', vr(PB + k), vr(PB + k))
        A.wait(ds=tk[3])
        for k in range(8):
            A.v('v_add_f32', vr(RS + k), vr(RS + k), vr(PS + k))
        for k in range(8):
            A.v('v_add_f32', vr(PB + k), '1.0', vr(PB + k))
        for k in range(8):
            A.v('v_rcp_f32', vr(PB + k), vr(PB + k))
        for k in range(8):
            A.v('v_mul_f32', vr(RS + k), vr(RS + k), vr(RB + k))
        for k in range(8):
            A.v('v_fmac_f32', vr(XU + k), vr(RS + k), vr(PB + k))
        for k in range(4):
            A.v('v_cvt_pk_bf16_f32', vr(XU + k), vr(XU + 2 * k), vr(XU + 2 * k + 1))
        A.bstore(2, XU, vOO, SOUT, sr(sXO))
        A.bstore(2, XU + 2, vOO, SOUT, sr(sXO), offset=32)

    def p2_mfma(self, s, W2F, ACB, ACS, AF, OFR):
        A = self.A
        ws = W2F + 16 * (s & 1)
        acc = ACB if s < 28 else ACS
        b = AF + 4 * s if s < 28 else OFR[s - 28]
        first = s in (0, 28)
        for ct in range(4):
            A.mfma('16', acc + 4 * ct, ws + 4 * ct, b, None if first else acc + 4 * ct)


HEADER = open('cdna_kernels/' + NAME + '.s.ref').read().split('; Override launch')[0]


def make(path, stop=None, opts=None):
    g = Gen(stop=stop, opts=opts)
    g.build()
    body = g.A.finalize()
    txt = HEADER
    txt += f'; @launch grid=(256,1,1) block=(512,1,1) lds={LDS_TOTAL}\n'
    txt += '.amdgcn_target "amdgcn-amd-amdhsa--gfx950"\n.text\n'
    txt += f'.globl {NAME}_kernel\n.p2align 8\n.type {NAME}_kernel,@function\n{NAME}_kernel:\n'
    txt += body + '\n'
    txt += f'''.section .rodata,"a"
.p2align 6
.amdhsa_kernel {NAME}_kernel
  .amdhsa_next_free_vgpr 256
  .amdhsa_next_free_sgpr 102
  .amdhsa_accum_offset 256
  .amdhsa_group_segment_fixed_size 0
  .amdhsa_kernarg_size 80
  .amdhsa_user_sgpr_count 2
  .amdhsa_user_sgpr_kernarg_segment_ptr 1
  .amdhsa_system_sgpr_workgroup_id_x 1
.end_amdhsa_kernel
'''
    open(path, 'w').write(txt)
    return g


if __name__ == '__main__':
    out = sys.argv[1] if len(sys.argv) > 1 else 'cdna_kernels/' + NAME + '.s'
    stop = sys.argv[2] if len(sys.argv) > 2 else None
    g = make(out, stop)
    n = sum(1 for i in g.A.final if i.kind not in ('comment', 'label'))
    print('instructions:', n)
```
